```python
import torch

def _softmax(x, axis=-1):
    return torch.softmax(x, dim=axis)
def _gelu(x):
    return torch.nn.functional.gelu(x, approximate="tanh")
def _silu(x):
    return torch.nn.functional.silu(x)
def _sigmoid(x):
    return torch.sigmoid(x)
def _layernorm(x, axis=-1, eps=1e-5):
    m = x.mean(dim=axis, keepdim=True)
    v = x.var(dim=axis, keepdim=True, unbiased=False)
    return (x - m) / torch.sqrt(v + eps)
def _scatter_add(tgt, idx, src, axis=0):
    return tgt.clone().index_add_(axis, idx, src)
def _segment_sum(src, seg, n):
    out = torch.zeros((n,) + src.shape[1:], dtype=src.dtype)
    return out.index_add_(0, seg, src)
def _pad(x, pw):
    flat = tuple(v for pair in reversed(pw) for v in pair)
    return torch.nn.functional.pad(x, flat)

kernel_name = 'standalone__modern_conv_block_slak__vision'

def setup_inputs():

    _w = (lambda a: (lambda t: t.to(torch.bfloat16) if t.is_floating_point() else t)(torch.as_tensor(a)))
    H = W = 224
    C = 96
    K = 7
    return {
        "x": _w((lambda *s: torch.randn(*s, dtype=torch.bfloat16) * 0.05)(1, H, W, C)),
        "dw": _w((lambda *s: torch.randn(*s, dtype=torch.bfloat16) * 0.05)(K, K, C)),
        "w1": _w((lambda *s: torch.randn(*s, dtype=torch.bfloat16) * 0.05)(C, 4 * C)),
        "w2": _w((lambda *s: torch.randn(*s, dtype=torch.bfloat16) * 0.05)(4 * C, C)),
        "grn_g": _w((lambda *s: torch.randn(*s, dtype=torch.bfloat16) * 0.05)(4 * C)),
        "grn_b": _w((lambda *s: torch.randn(*s, dtype=torch.bfloat16) * 0.05)(4 * C)),
    }

def reference(x, dw, w1, w2, grn_g, grn_b):
    B, H, W, C = x.shape
    K = dw.shape[0]
    pad = K // 2
    xp = _pad(x, ((0,0),(pad,pad),(pad,pad),(0,0)))
    out = torch.zeros_like(x)
    for i in range(K):
        for j in range(K):
            out = out + xp[:, i:i+H, j:j+W, :] * dw[i, j][None, None, None, :]
    h = _layernorm(out, axis=-1)
    h = _gelu(h @ w1)
    gx = torch.sqrt((h * h).sum(axis=(1, 2), keepdims=True) + 1e-6)
    nx = gx / (gx.mean(axis=-1, keepdims=True) + 1e-6)
    h = grn_g[None, None, None, :] * (h * nx) + grn_b[None, None, None, :] + h
    return x + h @ w2
```

```python
import sys, json

HDR = """
  s_load_dwordx2 s[4:5], s[0:1], 0
  s_load_dwordx2 s[6:7], s[0:1], 8
  s_load_dwordx2 s[8:9], s[0:1], 16
  v_and_b32 v1, 63, v0            ; lane
  v_lshrrev_b32 v2, 6, v0         ; wave
  v_mov_b32 v3, 0
  v_mov_b32 v4, 1
  s_waitcnt lgkmcnt(0)
"""

def spin_counter(label, off, target, tmp="v10"):
    return f"""
  s_mov_b32 s20, 2000000
{label}:
  global_load_dword {tmp}, v3, s[6:7] offset:{off} sc1
  s_waitcnt vmcnt(0)
  v_readfirstlane_b32 s21, {tmp}
  s_sub_u32 s20, s20, 1
  s_cmp_eq_u32 s20, 0
  s_cbranch_scc1 {label}_done
  s_cmp_lt_u32 s21, {target}
  s_cbranch_scc1 {label}
{label}_done:
"""

def arrive(off):
    return f"""
  s_barrier
  v_cmp_eq_u32 vcc, 0, v0
  s_and_saveexec_b64 s[22:23], vcc
  global_atomic_add v3, v4, s[6:7] offset:{off} sc1
  s_mov_b64 exec, s[22:23]
"""

TAIL = """
  s_waitcnt lgkmcnt(0) vmcnt(0)
  s_sub_u32 s36, s36, s34
  s_lshl_b32 s40, s2, 10
  v_lshlrev_b32 v21, 2, v0
  v_add_u32 v21, s40, v21
  global_store_dword v21, v20, s[4:5]
  v_mov_b32 v24, s30
  v_mov_b32 v25, s32
  v_mov_b32 v26, s36
  v_mov_b32 v27, s20
  s_lshl_b32 s40, s2, 6
  s_add_u32 s40, s40, 0x40000
  v_lshlrev_b32 v21, 4, v2
  v_add_u32 v21, s40, v21
  v_cmp_eq_u32 vcc, 0, v1
  s_and_saveexec_b64 s[22:23], vcc
  global_store_dwordx4 v21, v[24:27], s[4:5]
  s_waitcnt vmcnt(0)
  s_endpgm
"""

def T0():
    return """
  s_sleep 60
  s_barrier
  s_memrealtime s[30:31]
  s_memtime s[34:35]
  s_waitcnt lgkmcnt(0)
"""
def T1():
    return """
  s_memrealtime s[32:33]
  s_memtime s[36:37]
"""

def cand3(R, name):
    s = HDR
    nz = R * 8
    s += f"""
  s_cmp_ge_u32 s2, {nz}
  s_cbranch_scc1 {name}_nz
  s_lshl_b32 s24, s2, 8
  v_lshlrev_b32 v5, 2, v1
  v_add_u32 v5, s24, v5
  v_mov_b32 v6, 0
  global_atomic_swap v6, v5, v6, s[8:9] sc0 sc1
  s_waitcnt vmcnt(0)
{name}_nz:
"""
    s += arrive(0)
    s += spin_counter(f"{name}_sp0", 0, 256)
    s += f"""
  v_lshlrev_b32 v5, 7, v2
  v_add_u32 v5, v5, v1           ; d0
  v_add_u32 v6, 64, v5           ; d1
  s_and_b32 s24, s2, 7
  v_add_u32 v7, s24, v5
  v_cvt_f32_u32 v7, v7
  v_add_u32 v8, s24, v6
  v_cvt_f32_u32 v8, v8
  v_and_b32 v9, 3, v1
  v_cmp_eq_u32 vcc, 3, v9
  v_mov_b32 v9, 1.0
  s_nop 1
  v_cndmask_b32 v7, v7, v9, vcc
  v_cndmask_b32 v8, v8, v9, vcc
  s_lshr_b32 s25, s2, 3
  s_and_b32 s25, s25, {R-1}       ; replica
  s_lshl_b32 s25, s25, 11
  v_lshlrev_b32 v5, 2, v5
  v_add_u32 v5, s25, v5
  v_lshlrev_b32 v11, 4, v0
  v_mov_b32 v12, {float(256//R)}
"""
    s += T0()
    s += f"""
  global_atomic_add_f32 v5, v7, s[8:9]
  global_atomic_add_f32 v5, v8, s[8:9] offset:256
  s_mov_b32 s20, 200000
{name}_poll:
"""
    n = R // 2
    for i in range(n):
        if i * 4096 < 4096:
            s += f"  global_load_dwordx4 v[{32+4*i}:{35+4*i}], v11, s[8:9] offset:{i*4096} sc1\n"
        else:
            s += f"  v_add_u32 v13, {i*4096}, v11\n  global_load_dwordx4 v[{32+4*i}:{35+4*i}], v13, s[8:9] sc1\n"
    s += "  s_waitcnt vmcnt(0)\n"
    s += "  v_cmp_neq_f32 vcc, v35, v12\n"
    for i in range(1, n):
        s += f"  v_cmp_neq_f32 s[26:27], v{35+4*i}, v12\n  s_or_b64 vcc, vcc, s[26:27]\n"
    s += f"""
  s_sub_u32 s20, s20, 1
  s_cmp_eq_u32 s20, 0
  s_cbranch_scc1 {name}_pd
  s_cbranch_vccnz {name}_poll
{name}_pd:
"""
    s += "  v_mov_b32 v20, v32\n"
    for i in range(1, n):
        s += f"  v_add_f32 v20, v20, v{32+4*i}\n"
    s += "  s_barrier\n"
    s += T1()
    s += TAIL
    return s

def cand1(R, name, shards=4):
    s = HDR
    nz = R * 8 + 8
    s += f"""
  s_cmp_ge_u32 s2, {nz}
  s_cbranch_scc1 {name}_nz
  s_lshl_b32 s24, s2, 8
  v_lshlrev_b32 v5, 2, v1
  v_add_u32 v5, s24, v5
  v_mov_b32 v6, 0
  global_atomic_swap v6, v5, v6, s[8:9] sc0 sc1
  s_waitcnt vmcnt(0)
{name}_nz:
"""
    s += arrive(0)
    s += spin_counter(f"{name}_sp0", 0, 256)
    s += f"""
  v_lshlrev_b32 v5, 7, v2
  v_add_u32 v5, v5, v1           ; d0
  v_add_u32 v6, 64, v5           ; d1
  s_and_b32 s24, s2, 7
  v_add_u32 v7, s24, v5
  v_cvt_f32_u32 v7, v7
  v_add_u32 v8, s24, v6
  v_cvt_f32_u32 v8, v8
  s_lshr_b32 s25, s2, 3
  s_and_b32 s25, s25, {R-1}       ; replica
  s_lshl_b32 s25, s25, 11
  v_lshlrev_b32 v5, 2, v5
  v_add_u32 v5, s25, v5
  v_lshlrev_b32 v11, 4, v0
  s_and_b32 s28, s2, 7
  s_lshl_b32 s28, s28, 8
  s_add_u32 s28, s28, {R*2048}
  v_mov_b32 v14, s28
  v_and_b32 v15, 7, v1
  v_lshlrev_b32 v15, 8, v15
  v_add_u32 v15, {R*2048}, v15
"""
    s += T0()
    s += f"""
  global_atomic_add_f32 v5, v7, s[8:9]
  global_atomic_add_f32 v5, v8, s[8:9] offset:256
  s_waitcnt vmcnt(0)
  s_barrier
  v_cmp_eq_u32 vcc, 0, v0
  s_and_saveexec_b64 s[22:23], vcc
  global_atomic_add v14, v4, s[8:9] sc1
  s_mov_b64 exec, s[22:23]
  s_mov_b32 s20, 200000
{name}_poll:
  global_load_dword v16, v15, s[8:9] sc1
  s_waitcnt vmcnt(0)
  v_cmp_ne_u32 vcc, 32, v16
  s_sub_u32 s20, s20, 1
  s_cmp_eq_u32 s20, 0
  s_cbranch_scc1 {name}_pd
  s_cbranch_vccnz {name}_poll
{name}_pd:
"""
    n = R // 2
    for i in range(n):
        s += f"  v_add_u32 v13, {i*4096}, v11\n  global_load_dwordx4 v[{32+4*i}:{35+4*i}], v13, s[8:9] sc1\n"
    s += "  s_waitcnt vmcnt(0)\n"
    s += "  v_mov_b32 v20, v32\n"
    for i in range(1, n):
        s += f"  v_add_f32 v20, v20, v{32+4*i}\n"
    s += "  s_barrier\n"
    s += T1()
    s += TAIL
    return s

def cand2(name):
    s = HDR
    s += f"""
  s_lshl_b32 s24, s2, 11
  v_lshlrev_b32 v5, 4, v0
  v_add_u32 v5, s24, v5
  v_mov_b32 v28, 0
  v_mov_b32 v29, 0
  v_mov_b32 v30, 0
  v_mov_b32 v31, 0
  s_lshl_b32 s25, s2, 4
  s_add_u32 s25, s25, 0x80000
  v_mov_b32 v6, s25
  v_cmp_gt_u32 vcc, 128, v0
  s_and_saveexec_b64 s[22:23], vcc
  global_store_dwordx4 v5, v[28:31], s[8:9] sc0 sc1
  global_store_dwordx4 v6, v[28:31], s[8:9] sc0 sc1
  s_mov_b64 exec, s[22:23]
  s_waitcnt vmcnt(0)
"""
    s += arrive(0)
    s += spin_counter(f"{name}_sp0", 0, 256)
    s += f"""
  s_and_b32 s24, s2, 7
  v_lshlrev_b32 v7, 2, v0
  v_add_u32 v7, s24, v7
  v_cvt_f32_u32 v28, v7
  v_add_f32 v29, 1.0, v28
  v_add_f32 v30, 2.0, v28
  v_mov_b32 v31, 1
  s_and_b32 s26, s2, 127
  s_lshl_b32 s26, s26, 4
  v_lshlrev_b32 v8, 11, v0
  v_add_u32 v8, s26, v8
  v_and_b32 v9, 127, v0
  v_lshlrev_b32 v9, 4, v9
  v_add_u32 v9, 0x80000, v9
  v_lshlrev_b32 v17, 4, v2
"""
    s += T0()
    s += f"""
  v_cmp_gt_u32 vcc, 128, v0
  s_and_saveexec_b64 s[22:23], vcc
  global_store_dwordx4 v5, v[28:31], s[8:9] sc0 sc1
  s_mov_b64 exec, s[22:23]
  s_mov_b32 s20, 200000
  s_cmp_ge_u32 s2, 128
  s_cbranch_scc1 {name}_p2
{name}_poll:
  global_load_dwordx4 v[32:35], v8, s[8:9] sc0 sc1
  s_waitcnt vmcnt(0)
  v_cmp_ne_u32 vcc, 1, v35
  s_sub_u32 s20, s20, 1
  s_cmp_eq_u32 s20, 0
  s_cbranch_scc1 {name}_pd
  s_cbranch_vccnz {name}_poll
{name}_pd:
"""
    for r in (32, 33, 34):
        s += f"""
  v_add_f32_dpp v{r}, v{r}, v{r} quad_perm:[1,0,3,2] row_mask:0xf bank_mask:0xf
  s_nop 1
  v_add_f32_dpp v{r}, v{r}, v{r} quad_perm:[2,3,0,1] row_mask:0xf bank_mask:0xf
  s_nop 1
  v_add_f32_dpp v{r}, v{r}, v{r} row_half_mirror row_mask:0xf bank_mask:0xf
  s_nop 1
  v_add_f32_dpp v{r}, v{r}, v{r} row_mirror row_mask:0xf bank_mask:0xf
  s_nop 1
  v_add_f32_dpp v{r}, v{r}, v{r} row_bcast:15 row_mask:0xa bank_mask:0xf
  s_nop 1
  v_add_f32_dpp v{r}, v{r}, v{r} row_bcast:31 row_mask:0xc bank_mask:0xf
"""
    s += f"""
  v_cmp_eq_u32 vcc, 63, v1
  s_and_saveexec_b64 s[22:23], vcc
  ds_write_b128 v17, v[32:35]
  s_mov_b64 exec, s[22:23]
  s_waitcnt lgkmcnt(0)
  s_barrier
  ds_read_b128 v[36:39], v3
  ds_read_b128 v[40:43], v3 offset:16
  ds_read_b128 v[44:47], v3 offset:32
  ds_read_b128 v[48:51], v3 offset:48
  s_waitcnt lgkmcnt(0)
  v_add_f32 v36, v36, v40
  v_add_f32 v37, v37, v41
  v_add_f32 v38, v38, v42
  v_add_f32 v44, v44, v48
  v_add_f32 v45, v45, v49
  v_add_f32 v46, v46, v50
  v_add_f32 v36, v36, v44
  v_add_f32 v37, v37, v45
  v_add_f32 v38, v38, v46
  v_mov_b32 v39, 1
  v_cmp_eq_u32 vcc, 0, v0
  s_and_saveexec_b64 s[22:23], vcc
  global_store_dwordx4 v6, v[36:39], s[8:9] sc0 sc1
  s_mov_b64 exec, s[22:23]
{name}_p2:
  global_load_dwordx4 v[32:35], v9, s[8:9] sc0 sc1
  s_waitcnt vmcnt(0)
  v_cmp_ne_u32 vcc, 1, v35
  s_sub_u32 s20, s20, 1
  s_cmp_eq_u32 s20, 0
  s_cbranch_scc1 {name}_pd2
  s_cbranch_vccnz {name}_p2
{name}_pd2:
  v_mov_b32 v20, v32
  s_barrier
"""
    s += T1()
    s += TAIL
    return s

def wrap(name, body):
    t = f".globl {name}\n.p2align 8\n.type {name},@function\n{name}:\n{body}"
    kd = f"""
.p2align 6
.amdhsa_kernel {name}
  .amdhsa_next_free_vgpr 128
  .amdhsa_next_free_sgpr 96
  .amdhsa_accum_offset 128
  .amdhsa_group_segment_fixed_size 0
  .amdhsa_kernarg_size 24
  .amdhsa_user_sgpr_count 2
  .amdhsa_user_sgpr_kernarg_segment_ptr 1
  .amdhsa_system_sgpr_workgroup_id_x 1
.end_amdhsa_kernel
"""
    md = f"""  - .name: {name}
    .symbol: {name}.kd
    .kernarg_segment_size: 24
    .kernarg_segment_align: 8
    .group_segment_fixed_size: 0
    .private_segment_fixed_size: 0
    .wavefront_size: 64
    .sgpr_count: 96
    .vgpr_count: 128
    .max_flat_workgroup_size: 1024
    .args:
      - {{.name: kernargs, .size: 24, .offset: 0, .value_kind: by_value}}"""
    return t, kd, md


def emit(K, path):
    text = ['.amdgcn_target "amdgcn-amd-amdhsa--gfx950"', ".text"]
    kds = ['.section .rodata,"a"']
    mds = [".amdgpu_metadata\n---\namdhsa.version: [1, 2]\namdhsa.kernels:"]
    for n, b in K:
        t, k, m = wrap(n, b)
        text.append(t); kds.append(k); mds.append(m)
    mds.append("...\n.end_amdgpu_metadata\n")
    open(path, "w").write("\n".join(text) + "\n" + "\n".join(kds) + "\n" + "\n".join(mds))
    json.dump([n for n, _ in K], open(path + ".json", "w"))
```

```python
import sys
import ar_gen_lib as A
def mf32(d): return f"v_mfma_f32_32x32x16_bf16 v[{d}:{d+15}], v[100:103], v[104:107], v[{d}:{d+15}]"
def mf16(d): return f"v_mfma_f32_16x16x32_bf16 v[{d}:{d+3}], v[100:103], v[104:107], v[{d}:{d+3}]"
def unit(kind):
    d, T = 4, 40
    o = []
    pk = "plain" not in kind
    def two(op, args):
        pass
    for k in range(8):
        if pk: o.append(f"v_pk_fma_f32 v[{T+2*k}:{T+2*k+1}], v[{d+2*k}:{d+2*k+1}], v[{d+2*k}:{d+2*k+1}], s[20:21] neg_lo:[1,0,0] neg_hi:[1,0,0]")
        else: o += [f"v_fma_f32 v{T+2*k+h}, -v{d+2*k+h}, v{d+2*k+h}, v110" for h in range(2)]
    for k in range(8):
        if pk: o.append(f"v_pk_mul_f32 v[{T+2*k}:{T+2*k+1}], v[{d+2*k}:{d+2*k+1}], v[{T+2*k}:{T+2*k+1}]")
        else: o += [f"v_mul_f32 v{T+2*k+h}, v{d+2*k+h}, v{T+2*k+h}" for h in range(2)]
    for op in ("v_exp_f32", "v_rcp_f32"):
        for k in range(16):
            if "m32" in kind and k in (0, 3, 6): o.append(mf32(20))
            if "m16" in kind and k in (0, 2, 4, 6, 8, 10): o.append(mf16(20 + 4 * (k % 4)))
            if "notrans" not in kind: o.append(f"{op} v{T+k}, v{T+k}")
        if op == "v_exp_f32":
            for k in range(8):
                if pk: o.append(f"v_pk_add_f32 v[{T+2*k}:{T+2*k+1}], v[{T+2*k}:{T+2*k+1}], 1.0 op_sel_hi:[1,0]")
                else: o += [f"v_add_f32 v{T+2*k+h}, 1.0, v{T+2*k+h}" for h in range(2)]
    for k in range(8):
        if pk:
            o.append(f"v_pk_mul_f32 v[{60+2*k}:{61+2*k}], v[{d+2*k}:{d+2*k+1}], v[{T+2*k}:{T+2*k+1}]")
            o.append(f"v_pk_fma_f32 v[76:77], v[{60+2*k}:{61+2*k}], v[{60+2*k}:{61+2*k}], v[76:77]")
        else:
            o += [f"v_mul_f32 v{60+2*k+h}, v{d+2*k+h}, v{T+2*k+h}" for h in range(2)] + [f"v_fmac_f32 v{76+h}, v{60+2*k+h}, v{60+2*k+h}" for h in range(2)]
    if "transonly" in kind: o = [x for x in o if x.startswith(("v_exp", "v_rcp"))]
    if "nop" in kind:
        o2 = []
        for i, x in enumerate(o):
            o2.append(x)
        o = o2 + ["s_sleep 2"]
    return o
def body(name, kind, n):
    s = f"""
  s_load_dwordx2 s[4:5], s[0:1], 0
  v_and_b32 v1, 63, v0
  v_lshrrev_b32 v2, 6, v0
  s_mov_b32 s20, 0xc09d2f00
  s_mov_b32 s21, 0xc09d2f00
  v_mov_b32 v110, s20
"""
    for r in range(4, 20):
        s += f"  v_mul_u32_u24 v{r}, {40503 + 977*r}, v0\n  v_and_b32 v{r}, 0x807fffff, v{r}\n  v_lshlrev_b32 v3, 31, v{r}\n  v_or_b32 v{r}, 0x3e000000, v{r}\n  v_or_b32 v{r}, v3, v{r}\n"
    for r in range(100, 108):
        s += f"  v_mul_u32_u24 v{r}, {1000003 + 7919*r}, v0\n  v_and_b32 v{r}, 0xbe7fbe7f, v{r}\n  v_or_b32 v{r}, 0x3c003c00, v{r}\n"
    for r in list(range(20, 36)) + [76, 77]: s += f"  v_mov_b32 v{r}, 0\n"
    s += f"  s_mov_b32 s10, {n}\n  s_barrier\n  s_memrealtime s[50:51]\n  s_memtime s[34:35]\n.p2align 6\nL{name}:\n"
    s += "".join("  " + x + "\n" for x in unit(kind))
    s += f"""
  s_sub_u32 s10, s10, 1
  s_cmp_lg_u32 s10, 0
  s_cbranch_scc1 L{name}
  s_barrier
  s_memtime s[36:37]
  s_memrealtime s[52:53]
  s_waitcnt lgkmcnt(0)
  s_sub_u32 s36, s36, s34
  v_mov_b32 v24, s50
  v_mov_b32 v25, s52
  v_mov_b32 v26, s36
  v_mov_b32 v27, 0
  s_lshl_b32 s40, s2, 7
  v_lshlrev_b32 v21, 4, v2
  v_add_u32 v21, s40, v21
  v_cmp_eq_u32 vcc, 0, v1
  s_and_saveexec_b64 s[22:23], vcc
  global_store_dwordx4 v21, v[24:27], s[4:5]
  s_waitcnt vmcnt(0)
  s_endpgm
"""
    return s
K = [(k, body(k, k, 9)) for k in ("pk_m32", "pk_m16", "pk", "plain_m32", "transonly", "pk_notrans", "pk_m32_nop")]
A.emit(K, sys.argv[1])
```
